```python
import torch

def _softmax(x, axis=-1):
    return torch.softmax(x, dim=axis)
def _gelu(x):
    return torch.nn.functional.gelu(x, approximate="tanh")
def _silu(x):
    return torch.nn.functional.silu(x)
def _sigmoid(x):
    return torch.sigmoid(x)
def _layernorm(x, axis=-1, eps=1e-5):
    m = x.mean(dim=axis, keepdim=True)
    v = x.var(dim=axis, keepdim=True, unbiased=False)
    return (x - m) / torch.sqrt(v + eps)
def _scatter_add(tgt, idx, src, axis=0):
    return tgt.clone().index_add_(axis, idx, src)
def _segment_sum(src, seg, n):
    out = torch.zeros((n,) + src.shape[1:], dtype=src.dtype)
    return out.index_add_(0, seg, src)
def _pad(x, pw):
    flat = tuple(v for pair in reversed(pw) for v in pair)
    return torch.nn.functional.pad(x, flat)

kernel_name = 'concat_heads__gqa_block_cached__gqa_block_cached__near_ridge'

def setup_inputs():

    _w = (lambda a: (lambda t: t.to(torch.bfloat16) if t.is_floating_point() else t)(torch.as_tensor(a)))
    def _A_setup():
        B, Sq, D = 16, 48, 640
        Hq, Hkv, Sk, Dh = 32, 32, 48, 192
        assert Hq % Hkv == 0, (Hq, Hkv)
        return {
            "x": _w((lambda *s: torch.randn(*s, dtype=torch.bfloat16) * 0.8)(B, Sq, D)),
            "k_cache": _w((lambda *s: torch.randn(*s, dtype=torch.bfloat16) * 0.8)(B, Hkv, Sk, Dh)),
            "v_cache": _w((lambda *s: torch.randn(*s, dtype=torch.bfloat16) * 0.05)(B, Hkv, Sk, Dh)),
            "wq": _w((lambda *s: torch.randn(*s, dtype=torch.bfloat16) * 0.8)(D, Hq * Dh) * (D ** -0.5)),
            "wo": _w((lambda *s: torch.randn(*s, dtype=torch.bfloat16) * 0.05)(Hq * Dh, D) * ((Hq * Dh) ** -0.5)),
        }
    _A_in = _A_setup()

    def _B_setup():
        B, Sq, D = 16, 48, 640
        Hq, Hkv, Sk, Dh = 32, 32, 48, 192
        assert Hq % Hkv == 0, (Hq, Hkv)
        return {
            "x": _w((lambda *s: torch.randn(*s, dtype=torch.bfloat16) * 0.8)(B, Sq, D)),
            "k_cache": _w((lambda *s: torch.randn(*s, dtype=torch.bfloat16) * 0.8)(B, Hkv, Sk, Dh)),
            "v_cache": _w((lambda *s: torch.randn(*s, dtype=torch.bfloat16) * 0.05)(B, Hkv, Sk, Dh)),
            "wq": _w((lambda *s: torch.randn(*s, dtype=torch.bfloat16) * 0.8)(D, Hq * Dh) * (D ** -0.5)),
            "wo": _w((lambda *s: torch.randn(*s, dtype=torch.bfloat16) * 0.05)(Hq * Dh, D) * ((Hq * Dh) ** -0.5)),
        }
    _B_in = _B_setup()

    return {
        "A_x": _A_in["x"],
        "A_k_cache": _A_in["k_cache"],
        "A_v_cache": _A_in["v_cache"],
        "A_wq": _A_in["wq"],
        "A_wo": _A_in["wo"],
        "B_x": _B_in["x"],
        "B_k_cache": _B_in["k_cache"],
        "B_v_cache": _B_in["v_cache"],
        "B_wq": _B_in["wq"],
        "B_wo": _B_in["wo"],
    }

def reference(A_x, A_k_cache, A_v_cache, A_wq, A_wo, B_x, B_k_cache, B_v_cache, B_wq, B_wo):
    def _A_ref(x, k_cache, v_cache, wq, wo):
        B, Sq, D = x.shape
        Hq, Dh = 32, 192
        Hkv = k_cache.shape[1]
        rep = Hq // Hkv
        q = (lambda x, *d: x.permute(*d))((x @ wq).reshape(B, Sq, Hq, Dh), 0, 2, 1, 3)
        k = (lambda x, n, axis: torch.repeat_interleave(x, n, dim=axis))(k_cache, rep, axis=1)
        v = (lambda x, n, axis: torch.repeat_interleave(x, n, dim=axis))(v_cache, rep, axis=1)
        scores = torch.einsum("bhqd,bhkd->bhqk", q, k) * (Dh ** -0.5)
        p = _softmax(scores, axis=-1)
        o = torch.einsum("bhqk,bhkd->bhqd", p, v)
        return (lambda x, *d: x.permute(*d))(o, 0, 2, 1, 3).reshape(B, Sq, Hq * Dh) @ wo

    def _B_ref(x, k_cache, v_cache, wq, wo):
        B, Sq, D = x.shape
        Hq, Dh = 32, 192
        Hkv = k_cache.shape[1]
        rep = Hq // Hkv
        q = (lambda x, *d: x.permute(*d))((x @ wq).reshape(B, Sq, Hq, Dh), 0, 2, 1, 3)
        k = (lambda x, n, axis: torch.repeat_interleave(x, n, dim=axis))(k_cache, rep, axis=1)
        v = (lambda x, n, axis: torch.repeat_interleave(x, n, dim=axis))(v_cache, rep, axis=1)
        scores = torch.einsum("bhqd,bhkd->bhqk", q, k) * (Dh ** -0.5)
        p = _softmax(scores, axis=-1)
        o = torch.einsum("bhqk,bhkd->bhqd", p, v)
        return (lambda x, *d: x.permute(*d))(o, 0, 2, 1, 3).reshape(B, Sq, Hq * Dh) @ wo

    a = _A_ref(A_x, A_k_cache, A_v_cache, A_wq, A_wo)
    b = _B_ref(B_x, B_k_cache, B_v_cache, B_wq, B_wo)
    return torch.concatenate([a, b], axis=-1)
```

```python
class R:
    __slots__ = ("k", "i", "n")

    def __init__(self, k, i, n=1):
        self.k, self.i, self.n = k, i, n

    def __str__(self):
        if self.n == 1:
            return f"{self.k}{self.i}"
        return f"{self.k}[{self.i}:{self.i + self.n - 1}]"

    def regs(self):
        return {(self.k, self.i + j) for j in range(self.n)}

    def sub(self, off, n=1):
        assert off + n <= self.n, (str(self), off, n)
        return R(self.k, self.i + off, n)

    def __getitem__(self, j):
        return self.sub(j, 1)


def V(i, n=1):
    return R("v", i, n)


def A(i, n=1):
    return R("a", i, n)


def S(i, n=1):
    return R("s", i, n)


VCC = R("vcc", 0, 1)
M0 = R("m0", 0, 1)
EXEC = R("exec", 0, 1)


def _regs(xs):
    out = set()
    for x in xs:
        if isinstance(x, R):
            out |= x.regs()
    return out


def _fmt(x):
    if isinstance(x, R):
        if x.k in ("vcc", "m0", "exec"):
            return x.k
        return str(x)
    if isinstance(x, float):
        return repr(x)
    if isinstance(x, int) and (x > 64 or x < -16):
        return hex(x & 0xFFFFFFFF)
    return str(x)


TRANS = ("v_exp_f32", "v_rcp_f32", "v_log_f32", "v_rsq_f32", "v_sqrt_f32")


class Ins:
    __slots__ = ("text", "cls", "rd", "wr", "states", "srcc", "data", "trans", "perm")

    def __init__(self, text, cls, rd=(), wr=(), states=1):
        self.text, self.cls = text, cls
        self.rd, self.wr = set(rd), set(wr)
        self.states = states
        self.srcc = set()
        self.data = set()
        self.trans = False
        self.perm = False


class Prog:
    def __init__(self):
        self.out = []
        self.hist = []
        self.lgkm = []
        self.vm = []
        self.n_lgkm = 0
        self.n_vm = 0
        self.stats = {}

    def raw(self, text):
        self.out.append(text)

    def comment(self, text):
        self.out.append("; " + text)

    def label(self, name):
        self.out.append(name + ":")
        self.hist = [Ins("", "unknown", states=0)]

    def _push(self, ins):
        self.out.append("  " + ins.text)
        self.hist.append(ins)
        if len(self.hist) > 40:
            self.hist = self.hist[-40:]
        key = ins.text.split()[0]
        self.stats[key] = self.stats.get(key, 0) + 1

    def _need(self, ins):
        need = 0
        dist = 0
        for p in reversed(self.hist):
            req = 0
            if p.cls == "valu":
                if ins.cls == "mfma" and p.wr & ins.rd:
                    req = max(req, 2)
                if ins.perm and p.wr & (ins.rd | ins.wr):
                    req = max(req, 2)
                if p.trans and ins.cls == "valu" and not ins.trans and p.wr & ins.rd:
                    req = max(req, 1)
                sg = {r for r in p.wr if r[0] in ("s", "vcc")}
                if sg:
                    if ins.cls in ("vmem", "dma") and sg & ins.rd:
                        req = max(req, 5)
                    if ins.cls == "valu" and sg & ins.rd:
                        req = max(req, 2)
                    if ins.cls in ("salu", "smem") and sg & ins.rd:
                        req = max(req, 4)
                if ins.text.startswith(("v_readfirstlane", "v_readlane")) and p.wr & ins.rd:
                    req = max(req, 1)
                if ("exec", 0) in p.wr and ins.cls in ("mfma", "valu"):
                    req = max(req, 5)
            elif p.cls == "mfma":
                if ins.cls == "mfma":
                    if p.wr & (ins.rd - ins.srcc):
                        req = max(req, 8)
                    if p.wr & ins.srcc and p.wr != ins.srcc:
                        req = max(req, 6)
                    if p.wr & ins.wr and not ins.srcc:
                        req = max(req, 6)
                elif ins.cls in ("valu", "vmem", "dma", "ds"):
                    if p.wr & (ins.rd | ins.wr):
                        req = max(req, 8)
                    if ins.cls == "valu" and p.srcc & ins.wr:
                        req = max(req, 3)
            elif p.cls == "salu":
                if ("m0", 0) in p.wr and ins.cls == "dma":
                    req = max(req, 1)
            elif p.cls == "vmem":
                if p.data & ins.wr:
                    req = max(req, 2)
            if req > dist:
                need = max(need, req - dist)
            dist += p.states
            if dist >= 10:
                break
        return need

    def _auto_wait(self, ins):
        touched = ins.rd | ins.wr
        lg = None
        for seq, regs in self.lgkm:
            if regs & touched:
                lg = seq if lg is None else max(lg, seq)
        vm = None
        for seq, regs in self.vm:
            if regs & touched:
                vm = seq if vm is None else max(vm, seq)
        self._wait(lg, vm)

    def _wait(self, lg_seq, vm_seq):
        parts = []
        if vm_seq is not None and any(s <= vm_seq for s, _ in self.vm):
            n = min(self.n_vm - 1 - vm_seq, 63)
            parts.append(f"vmcnt({n})")
            keep = self.n_vm - n
            self.vm = [(s, r) for s, r in self.vm if s >= keep]
        if lg_seq is not None and any(s <= lg_seq for s, _ in self.lgkm):
            n = min(self.n_lgkm - 1 - lg_seq, 15)
            parts.append(f"lgkmcnt({n})")
            keep = self.n_lgkm - n
            self.lgkm = [(s, r) for s, r in self.lgkm if s >= keep]
        if parts:
            self._push(Ins("s_waitcnt " + " ".join(parts), "wait"))

    def emit(self, ins):
        self._auto_wait(ins)
        n = self._need(ins)
        while n > 0:
            k = min(n, 16)
            self._push(Ins(f"s_nop {k - 1}", "nop", states=k))
            n -= k
        self._push(ins)
        return ins

    def wait_vm(self, tok):
        self._wait(None, tok)

    def wait_lgkm(self, tok):
        self._wait(tok, None)

    def wait_all_lgkm(self):
        self._push(Ins("s_waitcnt lgkmcnt(0)", "wait"))
        self.lgkm = []

    def wait_all_vm(self):
        self._push(Ins("s_waitcnt vmcnt(0)", "wait"))
        self.vm = []

    def last_vm(self):
        return self.n_vm - 1

    def last_lgkm(self):
        return self.n_lgkm - 1

    def barrier(self):
        self._push(Ins("s_barrier", "other"))

    def nop(self, n):
        self._push(Ins(f"s_nop {n - 1}", "nop", states=n))

    def s(self, op, *ops, dst=1):
        wr = _regs(ops[:dst])
        rd = _regs(ops[dst:])
        return self.emit(Ins(f"{op} " + ", ".join(_fmt(o) for o in ops), "salu", rd, wr))

    def sraw(self, text, rd=(), wr=()):
        return self.emit(Ins(text, "salu", _regs(rd), _regs(wr)))

    def smem(self, op, dst, base, off):
        return self.emit(Ins(f"{op} {dst}, {base}, {hex(off)}", "smem", base.regs(), dst.regs()))

    def v(self, op, *ops, dst=1, rmw=False, extra_rd=(), extra_wr=(), mods=""):
        wr = _regs(ops[:dst]) | _regs(extra_wr)
        rd = _regs(ops[dst:]) | _regs(extra_rd)
        if rmw:
            rd |= _regs(ops[:dst])
        ins = Ins(f"{op} " + ", ".join(_fmt(o) for o in ops) + (" " + mods if mods else ""), "valu", rd, wr)
        ins.trans = op.split("_e")[0] in TRANS or op in TRANS
        ins.perm = op.startswith("v_permlane")
        return self.emit(ins)

    def vtext(self, text, rd, wr):
        ins = Ins(text, "valu", _regs(rd), _regs(wr))
        return self.emit(ins)

    def mfma(self, d, a, b, c, k16=False):
        op = "v_mfma_f32_16x16x16_bf16" if k16 else "v_mfma_f32_16x16x32_bf16"
        rd = a.regs() | b.regs()
        ins = Ins(f"{op} {d}, {a}, {b}, {_fmt(c)}", "mfma", rd, d.regs())
        if isinstance(c, R):
            ins.srcc = c.regs()
            ins.rd |= c.regs()
        return self.emit(ins)

    def ds_read(self, op, dst, addr, off=0):
        assert 0 <= off < 65536, off
        o = f" offset:{off}" if off else ""
        self.emit(Ins(f"{op} {dst}, {addr}{o}", "ds", addr.regs(), dst.regs()))
        self.lgkm.append((self.n_lgkm, dst.regs()))
        self.n_lgkm += 1
        return self.n_lgkm - 1

    def ds_write(self, op, addr, data, off=0):
        assert 0 <= off < 65536, off
        o = f" offset:{off}" if off else ""
        self.emit(Ins(f"{op} {addr}, {data}{o}", "ds", addr.regs() | data.regs(), ()))
        self.lgkm.append((self.n_lgkm, set()))
        self.n_lgkm += 1
        return self.n_lgkm - 1

    def _buf_tail(self, srd, soff, off, aux, offen=True):
        assert 0 <= off < 4096, off
        t = f"{srd}, {_fmt(soff)}"
        if offen:
            t += " offen"
        if off:
            t += f" offset:{off}"
        if aux:
            t += " " + aux
        return t

    def dma(self, vaddr, srd, soff, off=0, aux=""):
        rd = vaddr.regs() | srd.regs() | _regs([soff]) | M0.regs()
        self.emit(Ins(f"buffer_load_dwordx4 {vaddr}, {self._buf_tail(srd, soff, off, aux)} lds", "dma", rd, ()))
        self.vm.append((self.n_vm, set()))
        self.n_vm += 1
        return self.n_vm - 1

    def bload(self, dst, vaddr, srd, soff, off=0, aux=""):
        op = {1: "buffer_load_dword", 2: "buffer_load_dwordx2", 4: "buffer_load_dwordx4"}[dst.n]
        rd = vaddr.regs() | srd.regs() | _regs([soff])
        self.emit(Ins(f"{op} {dst}, {vaddr}, {self._buf_tail(srd, soff, off, aux)}", "vmem", rd, dst.regs()))
        self.vm.append((self.n_vm, dst.regs()))
        self.n_vm += 1
        return self.n_vm - 1

    def bstore(self, data, vaddr, srd, soff, off=0, aux=""):
        op = {1: "buffer_store_dword", 2: "buffer_store_dwordx2", 4: "buffer_store_dwordx4"}[data.n]
        rd = vaddr.regs() | srd.regs() | _regs([soff]) | data.regs()
        ins = Ins(f"{op} {data}, {vaddr}, {self._buf_tail(srd, soff, off, aux)}", "vmem", rd, ())
        if data.n >= 3:
            ins.data = data.regs()
        self.emit(ins)
        self.vm.append((self.n_vm, set()))
        self.n_vm += 1
        return self.n_vm - 1

    def text(self):
        return "\n".join(self.out) + "\n"


def interleave(p, mains, fillers, start=0, per_gap=1, lead=0):
    fillers = list(fillers)
    fi = 0
    for _ in range(lead):
        if fi < len(fillers):
            fillers[fi]()
            fi += 1
    n = len(mains)
    for i, m in enumerate(mains):
        m()
        if i < start:
            continue
        left = n - i
        want = min(len(fillers) - fi, max(per_gap, -(-(len(fillers) - fi) // left)))
        for _ in range(want):
            fillers[fi]()
            fi += 1
    while fi < len(fillers):
        fillers[fi]()
        fi += 1
```

```python
import math
import struct
import sys

sys.path.insert(0, "work")
from emit import A, EXEC, M0, Prog, R, S, V, VCC, interleave

NAME = "concat_heads__gqa_block_cached__gqa_block_cached__near_ridge"
WS_BYTES = 268435456
P_BYTES = 4608
P_TOTAL = 2 * 16 * 32 * P_BYTES
PART_OFF = 8 << 20
PART_TOTAL = 2 * 8 * 2 * 4 * 15 * 8192
SRD3 = 0x00020000

DEFAULT = dict(
    aux_wq="", aux_x="", aux_k="nt", aux_pst="",
    aux_wo="", aux_v="", aux_pld="", aux_part_st="", aux_part_ld="", aux_out="",
    code_prefetch=True,
)


def f32bits(x):
    return struct.unpack("<I", struct.pack("<f", x))[0]


def kernel_head(name):
    return f".globl {name}\n.p2align 8\n.type {name},@function\n{name}:\n"


def kernel_desc(name, nvgpr, accum, nsgpr=96):
    return (
        f".amdhsa_kernel {name}\n"
        f"  .amdhsa_next_free_vgpr {nvgpr}\n"
        f"  .amdhsa_next_free_sgpr {nsgpr}\n"
        f"  .amdhsa_accum_offset {accum}\n"
        "  .amdhsa_group_segment_fixed_size 0\n"
        "  .amdhsa_kernarg_size 104\n"
        "  .amdhsa_user_sgpr_count 2\n"
        "  .amdhsa_user_sgpr_kernarg_segment_ptr 1\n"
        "  .amdhsa_system_sgpr_workgroup_id_x 1\n"
        "  .amdhsa_float_denorm_mode_32 3\n"
        ".end_amdhsa_kernel\n"
    )


def load_args(p):
    p.smem("s_load_dwordx16", S(8, 16), S(0, 2), 0)
    p.smem("s_load_dwordx8", S(24, 8), S(0, 2), 64)
    p.smem("s_load_dwordx2", S(32, 2), S(0, 2), 96)


PTR = dict(x=(8, 18), k=(10, 20), v=(12, 22), wq=(14, 24), wo=(16, 26))


def select_ptr(p, which, dst):
    a, b = PTR[which]
    p.s("s_cselect_b32", dst[0], S(b), S(a))
    p.s("s_cselect_b32", dst[1], S(b + 1), S(a + 1))


def make_srd(p, srd, ptr, off, size, bias=0):
    p.s("s_add_u32", srd[0], ptr[0], off)
    p.s("s_addc_u32", srd[1], ptr[1], 0)
    if bias:
        p.s("s_sub_u32", srd[0], srd[0], bias)
        p.s("s_subb_u32", srd[1], srd[1], 0)
    p.s("s_mov_b32", srd[2], size)
    p.s("s_mov_b32", srd[3], SRD3)


def code_prefetch(p, tmpv, dsts, label, nbytes_sym):
    p.sraw("s_getpc_b64 s[90:91]", wr=[S(90, 2)])
    p.raw(f"{label}_pc:")
    p.sraw("s_mov_b32 s92, " + nbytes_sym, wr=[S(92)])
    p.s("s_mov_b32", S(92), S(92))
    p.sraw("s_mov_b32 s88, s90", rd=[S(90)], wr=[S(88)])
    p.sraw("s_and_b32 s89, s91, 0xffff", rd=[S(91)], wr=[S(89)])
    p.s("s_mov_b32", S(90), S(92))
    p.s("s_mov_b32", S(91), SRD3)
    p.v("v_lshlrev_b32", tmpv, 7, V(0))
    for i, d in enumerate(dsts):
        p.bload(d, tmpv, S(88, 4), 0 if i == 0 else S(93), 0)
        p.s("s_mov_b32", S(93), 32768 * (i + 1))


def gen_k1(cfg):
    p = Prog()
    sBR, sH, sBG, sW, sB, sT0, sT1, sW6 = (S(i) for i in range(36, 44))
    sPTR = S(44, 2)
    rWQ, rX, rK, rP = S(48, 4), S(52, 4), S(56, 4), S(60, 4)
    sWQo, sXo, sK2, sK4, sCs = (S(i) for i in range(64, 69))

    acc = lambda dt, tt: V(4 + 4 * (12 * tt + dt), 4)
    qfr = lambda tt, c: V(4 + 4 * (12 * tt + 2 * c), 4)
    sacc = lambda kt, tt: V(148 + 4 * (3 * tt + kt), 4)
    vWQ = [V(184 + i) for i in range(6)]
    vX = [V(190 + i) for i in range(6)]
    vA = [[V(196 + 4 * s + b) for b in range(4)] for s in range(3)]
    vB = [[V(208 + 2 * s + k) for k in range(2)] for s in range(3)]
    vKg = V(214)
    vKw = [V(215), V(216)]
    vKr = [V(217 + i) for i in range(4)]
    vP16, vP8 = V(221), V(222)
    vL, vt0, vt1, vt2, vt3 = V(223), V(224), V(225), V(226), V(227)
    vM = [V(228 + i) for i in range(3)]
    vTmp = [V(232 + i) for i in range(4)]
    PB = [V(236 + 4 * t, 4) for t in range(3)]
    PC01, PC2 = V(248, 4), V(252, 2)
    Abuf = [[A(24 * h + 4 * i, 4) for i in range(6)] for h in range(2)]
    Bbuf = [[A(48 + 12 * h + 4 * t, 4) for t in range(3)] for h in range(2)]
    Kst = [A(72 + 4 * i, 4) for i in range(18)]

    SLOT = 49152
    XOFF = 24576

    p.s("s_cmp_ge_u32", S(2), 256, dst=0)
    p.raw("  s_cbranch_scc1 K1_end")
    load_args(p)
    p.v("v_lshrrev_b32", vt0, 6, V(0))
    p.v("v_and_b32", vL, 63, V(0))
    p.v("v_readfirstlane_b32", sW, vt0)
    p.s("s_and_b32", sT0, S(2), 7)
    p.s("s_lshr_b32", sT1, S(2), 3)
    p.s("s_lshr_b32", sBR, sT0, 2)
    p.s("s_and_b32", sT0, sT0, 3)
    p.s("s_lshl_b32", sT0, sT0, 3)
    p.s("s_and_b32", sH, sT1, 7)
    p.s("s_add_u32", sH, sH, sT0)
    p.s("s_lshr_b32", sBG, sT1, 3)
    p.s("s_lshl_b32", sB, sBG, 2)
    p.s("s_add_u32", sB, sB, sW)
    p.s("s_mul_i32", sW6, sW, 6144)

    p.v("v_lshrrev_b32", vt0, 3, vL)
    p.v("v_mul_u32_u24", vt1, 1280, vt0)
    p.v("v_lshrrev_b32", vt2, 4, vL)
    p.v("v_and_b32", vt3, 7, vL)
    p.v("v_xor_b32", vt3, vt3, vt2)
    p.v("v_lshl_add_u32", vX[0], vt3, 4, vt1)
    p.v("v_xor_b32", vt3, 4, vt3)
    p.v("v_lshl_add_u32", vX[1], vt3, 4, vt1)
    p.v("v_add_u32", vX[1], 10240 - 1024, vX[1])
    for i in range(2, 6):
        imm = 1024 * (i & 3)
        base = vX[i & 1]
        base_imm = 1024 * (i & 1)
        p.v("v_add_u32", vX[i], (i - (i & 1)) * 10240 - imm + base_imm, base)
    p.v("v_mul_u32_u24", vt1, 12288, vt0)
    p.v("v_and_b32", vt2, 1, vt2)
    p.v("v_bfe_u32", vt3, vL, 1, 2)
    p.v("v_xor_b32", vt3, vt3, vt2)
    p.v("v_and_b32", vt2, 1, vL)
    p.v("v_lshl_add_u32", vt1, vt2, 4, vt1)
    p.v("v_lshl_add_u32", vWQ[0], vt3, 5, vt1)
    p.v("v_xor_b32", vt3, 2, vt3)
    p.v("v_lshl_add_u32", vWQ[3], vt3, 5, vt1)
    BIAS = 3072
    for i in (5, 4, 3, 2, 1, 0):
        rp, a = divmod(i, 3)
        imm = 1024 * (i & 3)
        p.v("v_add_u32", vWQ[i], BIAS + rp * 8 * 12288 + a * 128 - imm, vWQ[3 * rp])

    p.wait_all_lgkm()
    p.s("s_cmp_eq_u32", sBR, 1, dst=0)
    select_ptr(p, "x", sPTR)
    p.s("s_mul_i32", sT0, sB, 61440)
    make_srd(p, rX, sPTR, sT0, 61440)
    p.s("s_cmp_eq_u32", sBR, 1, dst=0)
    select_ptr(p, "wq", sPTR)
    p.s("s_mul_i32", sT0, sH, 384)
    p.s("s_mul_i32", sT1, sW, 16 * 12288)
    p.s("s_add_u32", sT0, sT0, sT1)
    make_srd(p, rWQ, sPTR, sT0, 0, bias=BIAS)
    p.s("s_sub_u32", rWQ[2], 640 * 12288 + BIAS, sT0)

    stage_tok = {}

    def dma_ops(st):
        slot = (st % 3) * SLOT
        ops = []

        def x_op(i):
            def f():
                if i == 0:
                    p.s("s_mov_b32", sXo, st * 128)
                if i in (0, 4):
                    p.s("s_add_u32", M0, sW6, slot + XOFF + 1024 * i)
                stage_tok[st] = p.dma(vX[i], rX, sXo, 1024 * (i & 3), cfg["aux_x"])
            return f

        def w_op(i):
            def f():
                if i == 0:
                    p.s("s_mov_b32", sWQo, st * 64 * 12288)
                if i in (0, 4):
                    p.s("s_add_u32", M0, sW6, slot + 1024 * i)
                stage_tok[st] = p.dma(vWQ[i], rWQ, sWQo, 1024 * (i & 3), cfg["aux_wq"])
            return f

        ops += [w_op(i) for i in range(6)]
        ops += [x_op(i) for i in range(6)]
        return ops

    for op in dma_ops(0):
        op()

    p.s("s_cmp_eq_u32", sBR, 1, dst=0)
    select_ptr(p, "k", sPTR)
    p.s("s_lshl_b32", sT0, sB, 5)
    p.s("s_add_u32", sT0, sT0, sH)
    p.s("s_mul_i32", sT1, sT0, 18432)
    make_srd(p, rK, sPTR, sT1, 18432)
    p.s("s_lshl_b32", sT1, sBR, 9)
    p.s("s_add_u32", sT0, sT0, sT1)
    p.s("s_mul_i32", sT0, sT0, P_BYTES)
    make_srd(p, rP, S(32, 2), sT0, P_BYTES)
    p.s("s_mov_b32", sK2, 6144)
    p.s("s_mov_b32", sK4, 12288)
    p.s("s_mov_b32", sCs, f32bits(192 ** -0.5 * math.log2(math.e)))

    for op in dma_ops(1):
        op()
    if cfg["code_prefetch"]:
        code_prefetch(p, vt0, [vTmp[0], vTmp[1]], "K1", "(CODE_END - K1_pc)")
    for op in dma_ops(2):
        op()

    p.v("v_lshrrev_b32", vt0, 4, vL)
    p.v("v_mul_u32_u24", vt1, 3072, vt0)
    p.v("v_bfe_u32", vt2, vL, 2, 2)
    p.v("v_lshl_add_u32", vt1, vt2, 7, vt1)
    p.v("v_and_b32", vt3, 3, vL)
    p.v("v_lshl_add_u32", vt1, vt3, 3, vt1)
    p.v("v_lshrrev_b32", vt2, 1, vt2)
    p.v("v_and_b32", vt3, 1, vt0)
    p.v("v_lshl_or_b32", vt2, vt3, 1, vt2)
    for b in range(4):
        p.v("v_xor_b32", vt3, b, vt2)
        p.v("v_lshl_add_u32", vA[0][b], vt3, 5, vt1)
        p.v("v_add_u32", vA[1][b], SLOT, vA[0][b])
        p.v("v_add_u32", vA[2][b], 2 * SLOT, vA[0][b])
    p.v("v_and_b32", vt1, 15, vL)
    p.v("v_lshrrev_b32", vt2, 1, vt1)
    p.v("v_xor_b32", vt2, vt2, vt0)
    p.v("v_lshlrev_b32", vt1, 7, vt1)
    p.v("v_add_u32", vt1, sW6, vt1)
    for k in range(2):
        p.v("v_xor_b32", vt3, 4 * k, vt2)
        p.v("v_lshl_add_u32", vB[0][k], vt3, 4, vt1)
        p.v("v_add_u32", vB[0][k], XOFF, vB[0][k])
        p.v("v_add_u32", vB[1][k], SLOT, vB[0][k])
        p.v("v_add_u32", vB[2][k], 2 * SLOT, vB[0][k])
    KREG = SLOT
    p.v("v_lshrrev_b32", vt1, 3, vL)
    p.v("v_mul_u32_u24", vt2, 384, vt1)
    p.v("v_and_b32", vt3, 7, vL)
    p.v("v_lshl_add_u32", vKg, vt3, 4, vt2)
    p.s("s_mul_i32", sT0, sW, 18432)
    p.s("s_add_u32", sT0, sT0, KREG)
    p.v("v_xor_b32", vt3, vt3, vt0)
    p.v("v_lshlrev_b32", vt1, 7, vt1)
    p.v("v_add_u32", vt1, sT0, vt1)
    p.v("v_lshl_add_u32", vKw[0], vt3, 4, vt1)
    p.v("v_xor_b32", vt3, 4, vt3)
    p.v("v_lshl_add_u32", vKw[1], vt3, 4, vt1)
    p.v("v_and_b32", vt1, 15, vL)
    p.v("v_lshrrev_b32", vt2, 1, vt1)
    p.v("v_lshrrev_b32", vt3, 1, vt0)
    p.v("v_xor_b32", vt2, vt2, vt3)
    p.v("v_lshlrev_b32", vt1, 7, vt1)
    p.v("v_and_b32", vt3, 1, vt0)
    p.v("v_lshl_add_u32", vt1, vt3, 3, vt1)
    p.v("v_add_u32", vt1, sT0, vt1)
    for j in range(4):
        p.v("v_xor_b32", vt3, 2 * j, vt2)
        p.v("v_lshl_add_u32", vKr[j], vt3, 4, vt1)
    p.v("v_lshlrev_b32", vP16, 4, vL)
    p.v("v_lshlrev_b32", vP8, 3, vL)

    def k_load(i):
        a, rg = divmod(i, 6)
        soff = [0, sK2, sK4][rg >> 1]
        return lambda: p.bload(Kst[i], vKg, rK, soff, 3072 * (rg & 1) + 128 * a, cfg["aux_k"])

    def k_write(i):
        a, rg = divmod(i, 6)
        return lambda: p.ds_write("ds_write_b128", vKw[rg & 1], Kst[i], a * 6144 + rg * 1024)

    def a_reads(st, sb):
        s, hf = divmod(sb, 2)
        ops = []
        for i in range(6):
            dt = 6 * hf + i
            a, b = divmod(dt, 4)
            for j2 in range(2):
                ops.append(lambda i=i, a=a, b=b, j2=j2: p.ds_read(
                    "ds_read_b64_tr_b16", Abuf[sb & 1][i].sub(2 * j2, 2), vA[st % 3][b],
                    s * 12288 + a * 1024 + j2 * 512))
        return ops

    def b_reads(st, s):
        return [lambda t=t: p.ds_read("ds_read_b128", Bbuf[s][t], vB[st % 3][s], t * 2048) for t in range(3)]

    def first_reads(st, sb):
        s, hf = divmod(sb, 2)
        ar = a_reads(st, sb)
        if hf:
            return ar
        br = b_reads(st, s)
        return ar[:2] + br + ar[2:]

    p.wait_vm(stage_tok[0])
    p.barrier()
    for op in first_reads(0, 0):
        op()

    pend = []
    for st in range(10):
        for sb in range(4):
            s, hf = divmod(sb, 2)
            if sb == 3 and st < 9:
                p.wait_all_lgkm()
                p.wait_vm(stage_tok[st + 1])
                p.barrier()
                if st + 3 < 10:
                    pend = dma_ops(st + 3)
                if st < 9:
                    kl = [k_load(2 * st), k_load(2 * st + 1)]
                    pend = pend + kl
                if st == 8:
                    pend = pend + [k_write(i) for i in range(16)]
            mains = []
            for i in range(6):
                for tt in range(3):
                    dt = 6 * hf + i
                    c = 0 if (st == 0 and s == 0) else acc(dt, tt)
                    mains.append(lambda i=i, tt=tt, dt=dt, c=c: p.mfma(acc(dt, tt), Abuf[sb & 1][i], Bbuf[s][tt], c))
            if sb < 3:
                fill = first_reads(st, sb + 1)
            elif st < 9:
                fill = first_reads(st + 1, 0)
            else:
                fill = []
            left_sb = {3: 4, 0: 3, 1: 2, 2: 1}[sb]
            take = -(-len(pend) // left_sb)
            extra, pend = pend[:take], pend[take:]
            if st == 9 and sb == 2:
                extra = extra + [k_write(16), k_write(17)]
            merged = []
            fi, ei = 0, 0
            while fi < len(fill) or ei < len(extra):
                for _ in range(4):
                    if fi < len(fill):
                        merged.append(fill[fi]); fi += 1
                if ei < len(extra):
                    merged.append(extra[ei]); ei += 1
            if st == 9 and sb == 3:
                merged = k_reads_first(p, Kst, vKr)
            interleave(p, mains, merged)

    def cvt_q(tt, c):
        r = acc(2 * c, tt).i
        return [lambda j=j: p.v("v_cvt_pk_bf16_f32", V(r + j), V(r + 2 * j), V(r + 2 * j + 1)) for j in range(4)]

    def softmax_ops(tt):
        vals = [sacc(kt, tt)[r] for kt in range(3) for r in range(4)]
        m, t0, t1 = vM[0], vTmp[2], vTmp[3]
        ops = []
        o = ops.append
        o(lambda: p.v("v_max3_f32", m, vals[0], vals[1], vals[2]))
        for j in range(3, 11, 2):
            o(lambda j=j: p.v("v_max3_f32", m, m, vals[j], vals[j + 1]))
        o(lambda: p.v("v_max_f32", m, m, vals[11]))
        o(lambda: p.v("v_mov_b32", t0, m))
        o(lambda: p.v("v_permlane32_swap_b32", m, t0, dst=2, rmw=True))
        o(lambda: p.v("v_max_f32", m, m, t0))
        o(lambda: p.v("v_mov_b32", t0, m))
        o(lambda: p.v("v_permlane16_swap_b32", m, t0, dst=2, rmw=True))
        o(lambda: p.v("v_max_f32", m, m, t0))
        o(lambda: p.v("v_mul_f32", m, sCs, m))
        for x in vals:
            o(lambda x=x: p.vtext(f"v_fma_f32 {x}, {x}, {sCs}, -{m}", [x, sCs, m], [x]))
        for x in vals:
            o(lambda x=x: p.v("v_exp_f32", x, x))
        l, l2 = vM[1], vM[2]
        o(lambda: p.v("v_add_f32", l, vals[0], vals[1]))
        o(lambda: p.v("v_add_f32", l2, vals[2], vals[3]))
        for j in range(4, 12, 2):
            o(lambda j=j: p.v("v_add_f32", l, l, vals[j]))
            o(lambda j=j: p.v("v_add_f32", l2, l2, vals[j + 1]))
        o(lambda: p.v("v_add_f32", l, l, l2))
        o(lambda: p.v("v_mov_b32", t1, l))
        o(lambda: p.v("v_permlane32_swap_b32", l, t1, dst=2, rmw=True))
        o(lambda: p.v("v_add_f32", l, l, t1))
        o(lambda: p.v("v_mov_b32", t1, l))
        o(lambda: p.v("v_permlane16_swap_b32", l, t1, dst=2, rmw=True))
        o(lambda: p.v("v_add_f32", l, l, t1))
        o(lambda: p.v("v_rcp_f32", l, l))
        for x in vals:
            o(lambda x=x: p.v("v_mul_f32", x, x, l))
        dsts = [PB[tt][0], PB[tt][1], PB[tt][2], PB[tt][3]]
        dsts += [PC01[2 * tt], PC01[2 * tt + 1]] if tt < 2 else [PC2[0], PC2[1]]
        for j in range(6):
            o(lambda j=j: p.v("v_cvt_pk_bf16_f32", dsts[j], vals[2 * j], vals[2 * j + 1]))
        o(lambda: p.bstore(PB[tt], vP16, rP, 0, 1024 * tt, cfg["aux_pst"]))
        if tt == 1:
            o(lambda: p.bstore(PC01, vP16, rP, 0, 3072, cfg["aux_pst"]))
        if tt == 2:
            o(lambda: p.bstore(PC2, vP8, rP, S(69), 0, cfg["aux_pst"]))
        return ops

    p.s("s_mov_b32", S(69), 4096)
    for op in cvt_q(0, 0) + cvt_q(0, 1):
        op()
    for tt in range(3):
        mains = []
        fill = []
        for c in range(6):
            for kt in range(3):
                cc = 0 if c == 0 else sacc(kt, tt)
                mains.append(lambda c=c, kt=kt, cc=cc: p.mfma(sacc(kt, tt), Kst[kt * 6 + c], qfr(tt, c), cc))
        if tt == 0:
            for c in range(2, 6):
                fill += cvt_q(0, c)
            for c in range(6):
                fill += cvt_q(1, c)
            interleave(p, mains, fill, per_gap=2)
        elif tt == 1:
            for c in range(6):
                fill += cvt_q(2, c)
            fill += softmax_ops(0)[:30]
            interleave(p, mains, fill, per_gap=3)
        else:
            fill += softmax_ops(0)[30:]
            fill += softmax_ops(1)[:14]
            interleave(p, mains, fill, per_gap=3)
    for op in softmax_ops(1)[14:] + softmax_ops(2):
        op()
    p.raw("K1_end:")
    p.raw("  s_endpgm")
    return p


def k_reads_first(p, Kst, vKr):
    ops = []
    for c in range(6):
        for kt in range(3):
            for j2 in range(2):
                ops.append(lambda c=c, kt=kt, j2=j2: p.ds_read(
                    "ds_read_b64", Kst[kt * 6 + c].sub(2 * j2, 2), vKr[2 * (c & 1) + j2],
                    (c >> 1) * 6144 + kt * 2048))
    return ops


def gen_k2(cfg):
    p = Prog()
    sBR, sHQ, sTG, sNT, sW, sB, sNH, sT0, sT1, sW5, sWv = (S(i) for i in range(34, 45))
    sPTR = S(46, 2)
    rWO, rV, rP, rO = S(48, 4), S(52, 4), S(56, 4), S(60, 4)
    sWOo, sVo, sPo, sP4, sOo = (S(i) for i in range(64, 69))

    acc = lambda i, tt: V(4 + 4 * (10 * tt + i), 4)
    pvd = [V(124 + 4 * t, 4) for t in range(3)]
    pvc = [V(136 + 2 * t, 2) for t in range(3)]
    vWO = [V(142 + i) for i in range(5)]
    vVg = [V(147 + i) for i in range(3)]
    vA = [[V(150 + 4 * s + b) for b in range(4)] for s in range(2)]
    vV = [V(158), V(159)]
    vExW, vExR, vP16, vP8 = V(160), V(161), V(162), V(163)
    vL, vt0, vt1, vt2, vt3, vt4 = (V(164 + i) for i in range(6))
    vPf = [V(170), V(171)]
    Abuf = [[A(20 * h + 4 * i, 4) for i in range(5)] for h in range(2)]
    Bbuf = [[A(40 + 12 * h + 4 * t, 4) for t in range(3)] for h in range(2)]
    Vf = A(64, 8)
    PBs = [[A(72 + 20 * h + 4 * t, 4) for t in range(3)] for h in range(2)]
    PCs = [A(72 + 20 * h + 12, 8) for h in range(2)]

    WSLOT, NW = 20480, 4
    VOFF, VSLOT, NV = 81920, 12288, 3
    EXOFF = 118784
    BIAS = 3072

    p.s("s_cmp_ge_u32", S(2), 256, dst=0)
    p.raw("  s_cbranch_scc1 K2_end")
    load_args(p)
    p.v("v_lshrrev_b32", vt0, 6, V(0))
    p.v("v_and_b32", vL, 63, V(0))
    p.v("v_readfirstlane_b32", sW, vt0)
    p.s("s_and_b32", sT0, S(2), 7)
    p.s("s_lshr_b32", sT1, S(2), 3)
    p.s("s_lshr_b32", sBR, sT0, 2)
    p.s("s_and_b32", sT0, sT0, 3)
    p.s("s_lshl_b32", sHQ, sT0, 1)
    p.s("s_bfe_u32", sT0, sT1, (1 << 16) | 2)
    p.s("s_add_u32", sHQ, sHQ, sT0)
    p.s("s_and_b32", sNT, sT1, 1)
    p.s("s_lshr_b32", sTG, sT1, 3)
    p.s("s_lshl_b32", sTG, sTG, 1)
    p.s("s_bfe_u32", sT0, sT1, (1 << 16) | 1)
    p.s("s_add_u32", sTG, sTG, sT0)
    p.s("s_and_b32", sT0, sW, 1)
    p.s("s_lshl_b32", sB, sTG, 1)
    p.s("s_add_u32", sB, sB, sT0)
    p.s("s_lshr_b32", sNH, sW, 1)
    p.s("s_mul_i32", sW5, sW, 5120)
    p.s("s_mul_i32", sWv, sT0, 6144)
    p.s("s_mul_i32", sT1, sNH, 3072)
    p.s("s_add_u32", sWv, sWv, sT1)

    p.v("v_lshrrev_b32", vt0, 3, vL)
    p.v("v_lshrrev_b32", vt1, 4, vL)
    p.v("v_bfe_u32", vt2, vL, 1, 2)
    p.v("v_xor_b32", vt2, vt2, vt1)
    p.v("v_lshlrev_b32", vt2, 5, vt2)
    p.v("v_and_b32", vt3, 1, vL)
    p.v("v_lshl_add_u32", vt2, vt3, 4, vt2)
    p.v("v_mul_u32_u24", vt3, 384, vt0)
    p.v("v_add_u32", vVg[0], vt3, vt2)
    for i in (1, 2):
        p.v("v_add_u32", vVg[i], i * (3072 - 1024), vVg[0])
    p.v("v_mul_u32_u24", vt3, 1280, vt0)
    p.v("v_add_u32", vt3, vt3, vt2)
    for a in range(5):
        p.v("v_add_u32", vWO[a], BIAS + 128 * a - 1024 * (a & 3), vt3)
    p.v("v_lshlrev_b32", vP16, 4, vL)
    p.v("v_lshlrev_b32", vP8, 3, vL)

    p.wait_all_lgkm()
    p.s("s_lshl_b32", sT0, sB, 5)
    p.s("s_lshl_b32", sT1, sHQ, 2)
    p.s("s_add_u32", sT0, sT0, sT1)
    p.s("s_lshl_b32", sT1, sBR, 9)
    p.s("s_add_u32", sT1, sT1, sT0)
    p.s("s_mul_i32", sT1, sT1, P_BYTES)
    make_srd(p, rP, S(32, 2), sT1, 4 * P_BYTES)
    p.s("s_cmp_eq_u32", sBR, 1, dst=0)
    select_ptr(p, "v", sPTR)
    p.s("s_mul_i32", sT0, sT0, 18432)
    p.s("s_mul_i32", sT1, sNH, 24 * 384)
    p.s("s_add_u32", sT0, sT0, sT1)
    make_srd(p, rV, sPTR, sT0, 0)
    p.s("s_sub_u32", rV[2], 4 * 18432, sT1)

    p_tok, v_tok, w_tok = {}, {}, {}

    def p_ops(hh):
        h = hh & 1
        ops = []

        def f(t):
            def g():
                if t == 0:
                    p.s("s_mov_b32", sPo, hh * P_BYTES)
                    p.s("s_mov_b32", sP4, hh * P_BYTES + 4096)
                if t < 3:
                    p_tok[hh] = p.bload(PBs[h][t], vP16, rP, sPo, 1024 * t, cfg["aux_pld"])
                elif t == 3:
                    p_tok[hh] = p.bload(PCs[h].sub(0, 4), vP16, rP, sPo, 3072, cfg["aux_pld"])
                else:
                    p_tok[hh] = p.bload(PCs[h].sub(4, 2), vP8, rP, sP4, 0, cfg["aux_pld"])
            return g
        return [f(t) for t in range(5)]

    def v_ops(u):
        hh, cp = divmod(u, 3)

        def f(i):
            def g():
                if i == 0:
                    p.s("s_mov_b32", sVo, hh * 18432 + cp * 128)
                    p.s("s_add_u32", M0, sWv, VOFF + (u % NV) * VSLOT)
                v_tok[u] = p.dma(vVg[i], rV, sVo, 1024 * i, cfg["aux_v"])
            return g
        return [f(i) for i in range(3)]

    def w_ops(t):
        def f(a):
            def g():
                if a == 0:
                    p.s("s_mov_b32", sWOo, t * 32 * 1280)
                if a in (0, 4):
                    p.s("s_add_u32", M0, sW5, (t % NW) * WSLOT + 1024 * a)
                w_tok[t] = p.dma(vWO[a], rWO, sWOo, 1024 * (a & 3), cfg["aux_wo"])
            return g
        return [f(a) for a in range(5)]

    for op in v_ops(0) + p_ops(0):
        op()

    p.s("s_cmp_eq_u32", sBR, 1, dst=0)
    select_ptr(p, "wo", sPTR)
    p.s("s_mul_i32", sT0, sHQ, 768 * 1280)
    p.s("s_mul_i32", sT1, sNT, 640)
    p.s("s_add_u32", sT0, sT0, sT1)
    p.s("s_mul_i32", sT1, sW, 8 * 1280)
    p.s("s_add_u32", sT0, sT0, sT1)
    make_srd(p, rWO, sPTR, sT0, 0, bias=BIAS)
    p.s("s_sub_u32", rWO[2], 6144 * 1280 + BIAS, sT0)

    for op in w_ops(0) + v_ops(1) + w_ops(1):
        op()
    if cfg["code_prefetch"]:
        code_prefetch(p, vt4, vPf[:1], "K2", "(CODE_END - K2_pc)")
    for op in w_ops(2) + v_ops(2) + w_ops(3):
        op()

    p.s("s_lshl_b32", sT0, sBR, 3)
    p.s("s_add_u32", sT0, sT0, sTG)
    p.s("s_lshl_b32", sT0, sT0, 1)
    p.s("s_add_u32", sT0, sT0, sNT)
    p.s("s_lshl_b32", sT0, sT0, 2)
    p.s("s_add_u32", sT0, sT0, sW)
    p.s("s_mul_i32", sT0, sT0, 15 * 8192)
    p.s("s_lshl_b32", sT1, sHQ, 10)
    p.s("s_add_u32", sT0, sT0, sT1)
    p.s("s_add_u32", sT0, sT0, PART_OFF)
    make_srd(p, rO, S(32, 2), sT0, 14 * 8192 + 1024)

    p.v("v_bfe_u32", vt0, vL, 2, 3)
    p.v("v_lshrrev_b32", vt1, 1, vt0)
    p.v("v_lshlrev_b32", vt0, 7, vt0)
    p.v("v_and_b32", vt2, 3, vL)
    p.v("v_lshl_add_u32", vt0, vt2, 3, vt0)
    p.v("v_lshrrev_b32", vt2, 5, vL)
    p.v("v_mul_u32_u24", vt3, 5120, vt2)
    p.v("v_add_u32", vt3, vt3, vt0)
    p.s("s_lshl_b32", sT0, sNH, 1)
    for m in range(4):
        p.s("s_add_u32", sT1, sT0, m)
        p.s("s_and_b32", S(69), sT1, 3)
        p.s("s_lshr_b32", sT1, sT1, 2)
        p.s("s_add_u32", sT1, sT1, sT0)
        p.s("s_lshl_b32", sT1, sT1, 10)
        p.v("v_xor_b32", vt4, S(69), vt1)
        p.v("v_lshl_add_u32", vA[0][m], vt4, 5, vt3)
        p.v("v_add_u32", vA[0][m], sT1, vA[0][m])
        p.v("v_add_u32", vA[1][m], 3 * WSLOT, vA[0][m])
    p.v("v_lshl_add_u32", vt0, vt2, 10, vt0)
    p.s("s_and_b32", sT0, sW, 1)
    p.s("s_mul_i32", sT1, sT0, 6144)
    p.s("s_add_u32", sT1, sT1, VOFF)
    p.v("v_add_u32", vt0, sT1, vt0)
    for cp in range(2):
        p.s("s_add_u32", sT1, sNH, 2 * cp)
        p.v("v_xor_b32", vt4, sT1, vt1)
        p.v("v_lshl_add_u32", vV[cp], vt4, 5, vt0)
    p.s("s_mul_i32", sT0, sT0, 3072)
    p.s("s_add_u32", sT0, sT0, EXOFF)
    p.v("v_add_u32", vExR, sT0, vP16)
    p.s("s_lshl_b32", sT1, sNH, 3)
    p.v("v_add_u32", vExW, sT1, vExR)

    def a_reads(t, hf):
        base = vA[1] if (t % NW) == 3 else vA[0]
        so = 0 if (t % NW) == 3 else (t % NW) * WSLOT
        ops = []
        for ii in range(5):
            i = 5 * hf + ii
            for j2 in range(2):
                ops.append(lambda ii=ii, i=i, j2=j2: p.ds_read(
                    "ds_read_b64_tr_b16", Abuf[hf][ii].sub(2 * j2, 2), base[i & 3],
                    so + j2 * 10240 + (i >> 2) * 1024))
        return ops

    def b_reads(t):
        return [lambda tt=tt: p.ds_read("ds_read_b128", Bbuf[t & 1][tt], vExR, (t & 1) * 6144 + tt * 1024) for tt in range(3)]

    def vf_reads(t):
        u, cp = divmod(t, 2)
        return [lambda m=m: p.ds_read("ds_read_b64_tr_b16", Vf.sub(2 * m, 2), vV[cp], (u % NV) * VSLOT + m * 2048) for m in range(3)]

    def pv_mfmas(t):
        h = (t // 6) & 1
        ops = []
        for tt in range(3):
            ops.append(lambda tt=tt: p.mfma(pvd[tt], Vf.sub(0, 4), PBs[h][tt], 0))
        for tt in range(3):
            ops.append(lambda tt=tt: p.mfma(pvd[tt], Vf.sub(4, 2), PCs[h].sub(2 * tt, 2), pvd[tt], k16=True))
        return ops

    def pv_out(t):
        ops = []
        for tt in range(3):
            ops.append(lambda tt=tt: p.v("v_cvt_pk_bf16_f32", pvc[tt][0], pvd[tt][0], pvd[tt][1]))
            ops.append(lambda tt=tt: p.v("v_cvt_pk_bf16_f32", pvc[tt][1], pvd[tt][2], pvd[tt][3]))
            ops.append(lambda tt=tt: p.ds_write("ds_write_b64", vExW, pvc[tt], (t & 1) * 6144 + tt * 1024))
        return ops

    def proj(t, hf):
        ops = []
        for ii in range(5):
            for tt in range(3):
                i = 5 * hf + ii
                c = 0 if t == 0 else acc(i, tt)
                ops.append(lambda ii=ii, i=i, tt=tt, c=c: p.mfma(acc(i, tt), Abuf[hf][ii], Bbuf[t & 1][tt], c))
        return ops

    p.wait_vm(v_tok[0])
    p.barrier()
    for op in vf_reads(0) + pv_mfmas(0) + pv_out(0):
        op()
    p.wait_all_lgkm()
    p.wait_vm(w_tok[0])
    p.barrier()
    for op in vf_reads(1) + b_reads(0) + a_reads(0, 0):
        op()

    NS = 24
    pend = p_ops(1)
    for t in range(NS):
        if t + 1 < NS:
            interleave(p, pv_mfmas(t + 1), pend[:6])
            pend = pend[6:]
        fill = a_reads(t, 1)
        if t + 1 < NS:
            po = pv_out(t + 1)
            fill = fill[:4] + po[:3] + fill[4:6] + po[3:6] + fill[6:8] + po[6:] + fill[8:]
        fill = pend + fill
        pend = []
        interleave(p, proj(t, 0), fill)
        if t + 1 < NS:
            p.wait_all_lgkm()
            toks = [w_tok[t + 1]]
            if t + 2 < NS:
                toks.append(v_tok[(t + 2) >> 1])
            p.wait_vm(max(toks))
            p.barrier()
            fill = []
            if t + 2 < NS:
                fill += vf_reads(t + 2)
            fill += b_reads(t + 1) + a_reads(t + 1, 0)
            if t + NW < NS:
                pend += w_ops(t + NW)
            if t % 2 == 0 and (t >> 1) + NV < 12:
                pend += v_ops((t >> 1) + NV)
            if t % 6 == 5 and t // 6 + 2 < 4:
                pend += p_ops(t // 6 + 2)
        else:
            fill = []
        interleave(p, proj(t, 1), fill)

    for tt in range(3):
        for pp in range(5):
            r = acc(2 * pp, tt).i
            for j in range(4):
                p.v("v_cvt_pk_bf16_f32", V(r + j), V(r + 2 * j), V(r + 2 * j + 1))
            p.s("s_mov_b32", sOo, (3 * pp + tt) * 8192)
            p.bstore(V(r, 4), vP16, rO, sOo, 0, cfg["aux_part_st"])
    p.raw("K2_end:")
    p.raw("  s_endpgm")
    return p


def gen_k3(cfg):
    p = Prog()
    sW, sBlk, sT0, sT1, sT2, sQ, sRow, sCol, sM = (S(i) for i in range(36, 45))
    rI, rO = S(48, 4), S(52, 4)
    vL, vOff, vt0, vt1, vSt = V(1), V(2), V(3), V(4), V(5)
    ld = [V(8 + 4 * i, 4) for i in range(8)]
    sm = V(40, 8)
    p.s("s_cmp_ge_u32", S(2), 480, dst=0)
    p.raw("  s_cbranch_scc1 K3_end")
    p.smem("s_load_dwordx2", S(28, 2), S(0, 2), 80)
    p.smem("s_load_dwordx2", S(32, 2), S(0, 2), 96)
    p.v("v_lshrrev_b32", vt0, 6, V(0))
    p.v("v_and_b32", vL, 63, V(0))
    p.v("v_readfirstlane_b32", sW, vt0)
    p.s("s_lshl_b32", sBlk, S(2), 2)
    p.s("s_add_u32", sBlk, sBlk, sW)
    p.v("v_lshlrev_b32", vOff, 4, vL)
    p.s("s_lshl_b32", sT0, sBlk, 13)
    p.s("s_add_u32", sT0, sT0, PART_OFF)
    p.wait_all_lgkm()
    make_srd(p, rI, S(32, 2), sT0, 8192)
    p.s("s_mov_b32", sT2, 4096)
    for i in range(8):
        p.bload(ld[i], vOff, rI, 0 if i < 4 else sT2, 1024 * (i & 3), cfg["aux_part_ld"])
    p.s("s_mul_hi_u32", sQ, sBlk, (2**32 + 14) // 15)
    p.s("s_mul_i32", sT0, sQ, 15)
    p.s("s_sub_u32", sT0, sBlk, sT0)
    p.s("s_mul_i32", sT1, sT0, 21846)
    p.s("s_lshr_b32", sT1, sT1, 16)
    p.s("s_mul_i32", sT2, sT1, 3)
    p.s("s_sub_u32", sT0, sT0, sT2)
    p.s("s_lshl_b32", sRow, sT0, 4)
    p.s("s_lshl_b32", sCol, sT1, 6)
    p.s("s_and_b32", sT0, sQ, 1)
    p.s("s_bfe_u32", sT1, sQ, (3 << 16) | 3)
    p.s("s_lshl_b32", sT1, sT1, 1)
    p.s("s_add_u32", sT0, sT0, sT1)
    p.s("s_mul_i32", sT0, sT0, 48)
    p.s("s_add_u32", sRow, sRow, sT0)
    p.s("s_bfe_u32", sT0, sQ, (2 << 16) | 1)
    p.s("s_mul_i32", sT0, sT0, 320)
    p.s("s_add_u32", sCol, sCol, sT0)
    p.s("s_lshr_b32", sT0, sQ, 6)
    p.s("s_mul_i32", sT0, sT0, 1280)
    p.s("s_add_u32", sCol, sCol, sT0)
    p.s("s_mul_i32", sRow, sRow, 2560)
    p.s("s_add_u32", sRow, sRow, sCol)
    make_srd(p, rO, S(28, 2), sRow, 15 * 2560 + 64)
    p.v("v_and_b32", vt0, 15, vL)
    p.v("v_mul_u32_u24", vSt, 2560, vt0)
    p.v("v_bfe_u32", vt0, vL, 4, 1)
    p.v("v_lshl_add_u32", vSt, vt0, 5, vSt)
    p.v("v_lshrrev_b32", vt0, 5, vL)
    p.v("v_lshl_add_u32", vSt, vt0, 4, vSt)
    p.s("s_mov_b32", sM, 0xFFFF0000)
    for j in range(4):
        p.v("v_lshlrev_b32", sm[2 * j], 16, ld[0][j])
        p.v("v_and_b32", sm[2 * j + 1], sM, ld[0][j])
    for i in range(1, 8):
        for j in range(4):
            p.v("v_lshlrev_b32", vt0, 16, ld[i][j])
            p.v("v_and_b32", vt1, sM, ld[i][j])
            p.v("v_add_f32", sm[2 * j], sm[2 * j], vt0)
            p.v("v_add_f32", sm[2 * j + 1], sm[2 * j + 1], vt1)
    o = ld[0]
    for j in range(4):
        p.v("v_cvt_pk_bf16_f32", o[j], sm[2 * j], sm[2 * j + 1])
    p.v("v_permlane16_swap_b32", o[0], o[2], dst=2, rmw=True)
    p.v("v_permlane16_swap_b32", o[1], o[3], dst=2, rmw=True)
    p.bstore(o, vSt, rO, 0, 0, cfg["aux_out"])
    p.raw("K3_end:")
    p.raw("  s_endpgm")
    return p


HEADER = """; concat_heads of two GQA blocks, three launches (generated by work/gen.py)
"""


def build(**over):
    cfg = dict(DEFAULT)
    cfg.update(over)
    k1, k2, k3 = gen_k1(cfg), gen_k2(cfg), gen_k3(cfg)
    out = HEADER
    out += "; @launch kernel=ch_k1_kernel grid=(256,1,1) block=(256,1,1) lds=147456\n"
    out += "; @launch kernel=ch_k2_kernel grid=(256,1,1) block=(256,1,1) lds=131072\n"
    out += "; @launch kernel=ch_k3_kernel grid=(480,1,1) block=(256,1,1) lds=0\n"
    out += '.amdgcn_target "amdgcn-amd-amdhsa--gfx950"\n.text\n'
    out += kernel_head("ch_k1_kernel") + k1.text()
    out += kernel_head("ch_k2_kernel") + k2.text()
    out += kernel_head("ch_k3_kernel") + k3.text()
    out += "CODE_END:\n"
    out += '.section .rodata,"a"\n.p2align 6\n'
    out += kernel_desc("ch_k1_kernel", 400, 256)
    out += ".p2align 6\n" + kernel_desc("ch_k2_kernel", 288, 176)
    out += ".p2align 6\n" + kernel_desc("ch_k3_kernel", 48, 48)
    return out, (k1, k2, k3)


if __name__ == "__main__":
    text, ks = build()
    dst = sys.argv[1] if len(sys.argv) > 1 else f"cdna_kernels/{NAME}.s"
    open(dst, "w").write(text)
    for k in ks:
        print(sorted(k.stats.items(), key=lambda x: -x[1]))
    print(len(text), "bytes")
```
